```python
import torch

def _softmax(x, axis=-1):
    return torch.softmax(x, dim=axis)
def _gelu(x):
    return torch.nn.functional.gelu(x, approximate="tanh")
def _silu(x):
    return torch.nn.functional.silu(x)
def _sigmoid(x):
    return torch.sigmoid(x)
def _layernorm(x, axis=-1, eps=1e-5):
    m = x.mean(dim=axis, keepdim=True)
    v = x.var(dim=axis, keepdim=True, unbiased=False)
    return (x - m) / torch.sqrt(v + eps)
def _scatter_add(tgt, idx, src, axis=0):
    return tgt.clone().index_add_(axis, idx, src)
def _segment_sum(src, seg, n):
    out = torch.zeros((n,) + src.shape[1:], dtype=src.dtype)
    return out.index_add_(0, seg, src)
def _pad(x, pw):
    flat = tuple(v for pair in reversed(pw) for v in pair)
    return torch.nn.functional.pad(x, flat)

kernel_name = 'concat_heads__mha_block_cached__mha_block_cached__near_ridge'

def setup_inputs():

    _w = (lambda a: (lambda t: t.to(torch.bfloat16) if t.is_floating_point() else t)(torch.as_tensor(a)))
    def _A_setup():
        B, Sq, D = 8, 240, 1024
        H, Sk, Dh = 32, 1024, 128
        return {
            "x": _w((lambda *s: torch.randn(*s, dtype=torch.bfloat16) * 0.8)(B, Sq, D)),
            "k_cache": _w((lambda *s: torch.randn(*s, dtype=torch.bfloat16) * 0.8)(B, H, Sk, Dh)),
            "v_cache": _w((lambda *s: torch.randn(*s, dtype=torch.bfloat16) * 0.05)(B, H, Sk, Dh)),
            "wq": _w((lambda *s: torch.randn(*s, dtype=torch.bfloat16) * 0.8)(D, H * Dh) * (D ** -0.5)),
            "wo": _w((lambda *s: torch.randn(*s, dtype=torch.bfloat16) * 0.05)(H * Dh, D) * ((H * Dh) ** -0.5)),
        }
    _A_in = _A_setup()

    def _B_setup():
        B, Sq, D = 8, 240, 1024
        H, Sk, Dh = 32, 1024, 128
        return {
            "x": _w((lambda *s: torch.randn(*s, dtype=torch.bfloat16) * 0.8)(B, Sq, D)),
            "k_cache": _w((lambda *s: torch.randn(*s, dtype=torch.bfloat16) * 0.8)(B, H, Sk, Dh)),
            "v_cache": _w((lambda *s: torch.randn(*s, dtype=torch.bfloat16) * 0.05)(B, H, Sk, Dh)),
            "wq": _w((lambda *s: torch.randn(*s, dtype=torch.bfloat16) * 0.8)(D, H * Dh) * (D ** -0.5)),
            "wo": _w((lambda *s: torch.randn(*s, dtype=torch.bfloat16) * 0.05)(H * Dh, D) * ((H * Dh) ** -0.5)),
        }
    _B_in = _B_setup()

    return {
        "A_x": _A_in["x"],
        "A_k_cache": _A_in["k_cache"],
        "A_v_cache": _A_in["v_cache"],
        "A_wq": _A_in["wq"],
        "A_wo": _A_in["wo"],
        "B_x": _B_in["x"],
        "B_k_cache": _B_in["k_cache"],
        "B_v_cache": _B_in["v_cache"],
        "B_wq": _B_in["wq"],
        "B_wo": _B_in["wo"],
    }

def reference(A_x, A_k_cache, A_v_cache, A_wq, A_wo, B_x, B_k_cache, B_v_cache, B_wq, B_wo):
    def _A_ref(x, k_cache, v_cache, wq, wo):
        B, Sq, D = x.shape
        H, Dh = 32, 128
        q = (lambda x, *d: x.permute(*d))((x @ wq).reshape(B, Sq, H, Dh), 0, 2, 1, 3)
        scores = torch.einsum("bhqd,bhkd->bhqk", q, k_cache) * (Dh ** -0.5)
        p = _softmax(scores, axis=-1)
        o = torch.einsum("bhqk,bhkd->bhqd", p, v_cache)
        return (lambda x, *d: x.permute(*d))(o, 0, 2, 1, 3).reshape(B, Sq, H * Dh) @ wo

    def _B_ref(x, k_cache, v_cache, wq, wo):
        B, Sq, D = x.shape
        H, Dh = 32, 128
        q = (lambda x, *d: x.permute(*d))((x @ wq).reshape(B, Sq, H, Dh), 0, 2, 1, 3)
        scores = torch.einsum("bhqd,bhkd->bhqk", q, k_cache) * (Dh ** -0.5)
        p = _softmax(scores, axis=-1)
        o = torch.einsum("bhqk,bhkd->bhqd", p, v_cache)
        return (lambda x, *d: x.permute(*d))(o, 0, 2, 1, 3).reshape(B, Sq, H * Dh) @ wo

    a = _A_ref(A_x, A_k_cache, A_v_cache, A_wq, A_wo)
    b = _B_ref(B_x, B_k_cache, B_v_cache, B_wq, B_wo)
    return torch.concatenate([a, b], axis=-1)
```

```python
class Asm:
    def __init__(self):
        self.L = []
    def __call__(self, s):
        for x in s.split("\n"):
            x = x.strip()
            if x: self.L.append(x)
    def ext(self, lst):
        for x in lst: self(x)
    def label(self, n): self.L.append(n + ":")
    def text(self): return "\n".join(self.L) + "\n"

def vr(b, n=1): return f"v{b}" if n == 1 else f"v[{b}:{b+n-1}]"
def ar(b, n=1): return f"a{b}" if n == 1 else f"a[{b}:{b+n-1}]"
def sr(b, n=1): return f"s{b}" if n == 1 else f"s[{b}:{b+n-1}]"

def merge(mf, gaps, pre=None):
    out = list(pre or [])
    for i, m in enumerate(mf):
        out.append(m)
        out.extend(gaps.get(i, []))
    return out

def kd(name, vgpr=512, accum=256, sgpr=102, kernarg=104):
    return f""".amdhsa_kernel {name}
  .amdhsa_next_free_vgpr {vgpr}
  .amdhsa_next_free_sgpr {sgpr}
  .amdhsa_accum_offset {accum}
  .amdhsa_group_segment_fixed_size 0
  .amdhsa_kernarg_size {kernarg}
  .amdhsa_user_sgpr_count 2
  .amdhsa_user_sgpr_kernarg_segment_ptr 1
  .amdhsa_system_sgpr_workgroup_id_x 1
.end_amdhsa_kernel
"""
```

```python
from asmlib import *

S0   = 0
P0   = 64
NEGM = 96
LACC = 112
QF   = 128
ONES = 192
VKA  = 196
VVA  = 200
VKD  = 208
VVD  = 210
VWD  = 212
VXD  = 216
VXR0 = 220
VXR  = 222
VWR  = 224
VRL  = 232
VOS  = 236
VT   = 237
OA = 0; KF = 128; VF = 160; XF = 192
sK = 8; sV = 12; sX = 16; sW = 20; sO = 24
sWV = 28; sW4 = 29; sW8 = 30; sB = 31; sH = 32
sKV0 = 33; sKoff = 34; sWoff = 35; sXoff = 36; sXoff2 = 37
sXm0 = 38; sWm0 = 39; sXr0 = 40; sXr1 = 41; sXr2 = 42
sWrd = 43; sCnt = 44; sItem = 45; sFlag = 46; sOoff = 47
sPA = 48
sPB = 56
sPWS = 64
sXd2 = 66
sXm2 = 67
sONE = 68
sT0 = 70; sT1 = 71; sT2 = 72; sT3 = 73
sO0 = 74
sVoff = 75
XB = [0, 32768, 131072]
FLG = 161792
QSCALE = 1.4426950408889634 / (128 ** 0.5)

def Sreg(buf, kt, qt, r=0): return S0 + buf*32 + (kt*4+qt)*4 + r
def Preg(buf, qt, i=0): return P0 + buf*16 + qt*4 + i
def Qreg(qt, dc, i=0): return QF + (qt*4+dc)*4 + i
def Oreg(dt, qt, r=0): return OA + (dt*4+qt)*4 + r
def KFreg(i): return KF + i*4
def VFreg(dt): return VF + dt*4
def XFreg(buf, qt): return XF + buf*16 + qt*4
def Acc(dt, qt, r=0): return (dt*4+qt)*4 + r
MF = "v_mfma_f32_16x16x32_bf16"

def mf_qk(kt, dc, qt, buf, czero=False):
    d = vr(Sreg(buf, kt, qt), 4)
    c = (("0" if czero else vr(NEGM+4*qt, 4)) if dc == 0 else d)
    return f"{MF} {d}, {ar(KFreg(kt*4+dc),4)}, {vr(Qreg(qt,dc),4)}, {c}"
def mf_pv(dt, qt, pbuf, first=False):
    o = ar(Oreg(dt, qt), 4)
    return f"{MF} {o}, {ar(VFreg(dt),4)}, {vr(Preg(pbuf,qt),4)}, {'0' if first else o}"
def mf_l(qt, pbuf, first=False):
    o = vr(LACC+4*qt, 4)
    return f"{MF} {o}, {vr(ONES,4)}, {vr(Preg(pbuf,qt),4)}, {'0' if first else o}"
def mf_q(dt, qt, xbuf, first=False):
    d = vr(Acc(dt, qt), 4)
    return f"{MF} {d}, {ar(VFreg(dt),4)}, {ar(XFreg(xbuf,qt),4)}, {'0' if first else d}"

def k_read(i, slot, hh):
    kt, dc = i >> 2, i & 3
    return f"ds_read_b128 {ar(KFreg(i),4)}, {vr(VKA+dc)} offset:{slot*16384 + hh*8192 + kt*1024}"
def v_read(dt, u, slot, hh):
    return f"ds_read_b64_tr_b16 {ar(VFreg(dt)+2*u,2)}, {vr(VVA+dt)} offset:{slot*16384 + hh*8192 + u*1024}"
def w_read(dt, u, hh):
    return f"ds_read_b64_tr_b16 {ar(VFreg(dt)+2*u,2)}, {vr(VWR+dt)} offset:{hh*8192 + u*1024}"
def x_read(qt, buf, kc):
    return f"ds_read_b128 {ar(XFreg(buf,qt),4)}, {vr(VXR+kc)} offset:{qt*2048}"

def dma(vreg, srd, soff, i, nt=""):
    return f"buffer_load_dwordx4 {vr(vreg)}, {sr(srd,4)}, {sr(soff)} offen offset:{i*1024}{nt} lds"
def dma_k(i, nt=""): return dma(VKD+(i>>1), sK, sKoff, i, nt)
def dma_v(i, nt=""): return dma(VVD+(i>>1), sV, sVoff, i, nt)
def dma_w(i): return dma(VWD+i, sW, sWoff, i)
def dma_x(i): return dma(VXD+(i&3), sX, sXoff if i < 4 else sXoff2, i & 3)
def m0_set(sreg, imm=0):
    if imm == 0: return f"s_mov_b32 m0, {sr(sreg)}"
    return f"s_add_u32 m0, {sr(sreg)}, {imm}"

class Cfg:
    summode = "mfma"
    nt_kv = ""
    stage = "full"
    fallback = True

def half_step(cfg, h_par, do_qk=True, do_sm=True, do_pv=True, kread=None, vread=None, prev_vread=None,
              misc=None, first_pv=False, wreads=None, waits=True):
    summode = cfg.summode
    sb_w = (h_par+1) & 1; sb_r = h_par & 1; pb_w = h_par & 1; pb_r = (h_par+1) & 1
    misc = misc or {}
    E = [(kt, qt, r) for kt in range(2) for qt in range(4) for r in range(4)]
    def exp_i(e):
        kt, qt, r = E[e]; x = vr(Sreg(sb_r, kt, qt, r)); return f"v_exp_f32 {x}, {x}"
    def cvt_i(c):
        kt, qt, r = E[2*c]
        return f"v_cvt_pk_bf16_f32 {vr(Preg(pb_w,qt,2*kt+(r>>1)))}, {vr(Sreg(sb_r,kt,qt,r))}, {vr(Sreg(sb_r,kt,qt,r+1))}"
    def sum_i(c):
        kt, qt, r = E[2*c]
        if summode == "dot2":
            return [f"v_dot2c_f32_bf16 {vr(LACC+qt)}, {sr(sONE)}, {vr(Preg(pb_w,qt,2*kt+(r>>1)))}"]
        if summode == "add":
            return [f"v_add_f32 {vr(LACC+qt)}, {vr(LACC+qt)}, {vr(Sreg(sb_r,kt,qt,r))}",
                    f"v_add_f32 {vr(LACC+qt)}, {vr(LACC+qt)}, {vr(Sreg(sb_r,kt,qt,r+1))}"]
        return []
    out = []
    for b in range(8):
        g = [[] for _ in range(8)]
        mq = [mf_qk(b >> 2, b & 3, qt, sb_w) for qt in range(4)] if do_qk else []
        mv = [mf_pv(b, qt, pb_r, first_pv) for qt in range(4)] if do_pv else []
        ml = []
        if summode == "mfma" and do_pv and b in (1, 3, 5, 7):
            ml = [mf_l(b >> 1, pb_r, first_pv)]
        if do_sm:
            g[0].append(exp_i(4*b)); g[1].append(exp_i(4*b+1)); g[4].append(exp_i(4*b+2)); g[5].append(exp_i(4*b+3))
        if b == 0:
            if prev_vread is not None: g[2].append(v_read(7, 1, *prev_vread))
        elif vread is not None: g[2].append(v_read(b-1, 1, *vread))
        if do_sm and b > 0: g[2].extend(sum_i(2*b-1))
        if do_sm: g[3].append(cvt_i(2*b))
        if kread is not None: g[3].append(k_read(b, *kread))
        if do_sm: g[6].extend(sum_i(2*b))
        if do_sm: g[7].append(cvt_i(2*b+1))
        if vread is not None: g[7].append(v_read(b, 0, *vread))
        if wreads is not None: g[7].extend(wreads(b))
        if do_sm and b == 7: g[7].extend(sum_i(15))
        if waits and b in (3, 7): g[6].append(f"s_waitcnt lgkmcnt({10 if kread is not None else 6})")
        for gi in range(8):
            g[gi].extend(misc.get((b, gi), []))
        ms = [mq[i] if i < len(mq) else None for i in range(4)] + [mv[i] if i < len(mv) else None for i in range(4)]
        for i in range(8):
            if ms[i] is not None: out.append(ms[i])
            if i == 6 and ml:
                keep = g[6][:1]; rest = g[6][1:]
                out.extend(keep); out.extend(ml); out.extend(rest)
            else:
                out.extend(g[i])
    return out

def att_step(cfg, s, steady=True):
    nt = cfg.nt_kv
    out = []
    slotK = (s+1) & 3; slotV = s & 3
    misc0 = {}; misc1 = {}
    def add(m, b, gi, ins): m.setdefault((b, gi), []).extend(ins if isinstance(ins, list) else [ins])
    nd = 0
    if s <= 12:
        add(misc0, 0, 2, m0_set(sW4, ((s+3) & 3)*16384))
        for i in range(4): add(misc0, i, 6, dma_k(i, nt))
        add(misc0, 4, 2, m0_set(sW4, 65536 + ((s+2) & 3)*16384))
        for i in range(4): add(misc0, 4+i, 6, dma_v(i, nt))
        add(misc1, 0, 6, f"s_add_u32 {sr(sKoff)}, {sr(sKoff)}, 16384")
        add(misc1, 1, 6, f"s_add_u32 {sr(sVoff)}, {sr(sVoff)}, 16384")
        nd = 8
    elif s == 13:
        add(misc0, 0, 2, m0_set(sW4, 65536 + 3*16384))
        for i in range(4): add(misc0, i, 6, dma_v(i, nt))
        add(misc0, 4, 2, m0_set(sW8, XB[2]))
        for i in range(4): add(misc0, 4+i, 6, dma_x(i))
        add(misc1, 0, 2, f"s_add_u32 m0, m0, {sr(sXm2)}")
        for i in range(4): add(misc1, i, 6, dma_x(4+i))
        add(misc1, 4, 6, [f"s_add_u32 {sr(sXoff)}, {sr(sXoff)}, 128"])
        add(misc1, 5, 6, [f"s_add_u32 {sr(sXoff2)}, {sr(sXoff2)}, 128"])
        nd = 12
    elif s == 14:
        add(misc0, 0, 2, m0_set(sW4, 65536))
        for i in range(4): add(misc0, i, 6, dma_w(i))
        add(misc0, 4, 2, m0_set(sW8, XB[0]))
        for i in range(4): add(misc0, 4+i, 6, dma_x(i))
        add(misc1, 0, 2, f"s_add_u32 m0, m0, {sr(sXm2)}")
        for i in range(4): add(misc1, i, 6, dma_x(4+i))
        add(misc1, 4, 6, [f"s_add_u32 {sr(sXoff)}, {sr(sXoff)}, 128"])
        add(misc1, 5, 6, [f"s_add_u32 {sr(sXoff2)}, {sr(sXoff2)}, 128"])
        add(misc1, 6, 6, [f"s_add_u32 {sr(sWoff)}, {sr(sWoff)}, 524288"])
        nd = 12
    elif s == 15:
        add(misc0, 0, 2, m0_set(sW4, 65536 + 16384))
        for i in range(4): add(misc0, i, 6, dma_w(i))
        add(misc1, 0, 6, [f"s_add_u32 {sr(sWoff)}, {sr(sWoff)}, 524288"])
        nd = 4
    h0 = 2*s; h1 = 2*s+1
    out += half_step(cfg, 0, do_qk=True, do_sm=True, do_pv=(s > 0),
                     kread=((slotK, 0) if s <= 14 else None), vread=(slotV, 0),
                     prev_vread=(((s-1) & 3, 1) if s > 0 else None), misc=misc0)
    out += half_step(cfg, 1, do_qk=(s < 15), do_sm=True, do_pv=True,
                     kread=((slotK, 1) if s <= 14 else None), vread=(slotV, 1),
                     prev_vread=(slotV, 0), misc=misc1, first_pv=(s == 0))
    out.append(f"s_waitcnt vmcnt({nd})")
    out.append("s_barrier")
    return out

def q_half(xbuf, first=False, rd_hh=None, misc=None, waits=True):
    misc = misc or {}
    out = []
    for b in range(8):
        if waits and rd_hh is not None:
            if b == 3: out.append("s_waitcnt lgkmcnt(13)")
            if b == 6: out.append("s_waitcnt lgkmcnt(15)")
        if waits and rd_hh is None:
            if b == 3: out.append("s_waitcnt lgkmcnt(0)")
        for qt in range(4):
            out.append(mf_q(b, qt, xbuf, first))
            if qt == 1 and rd_hh is not None and b < 4: out.append(x_read(b, 1-xbuf, rd_hh))
            if qt == 3 and rd_hh is not None:
                out.append(w_read(b, 0, rd_hh)); out.append(w_read(b, 1, rd_hh))
            out.extend(misc.get((b, qt), []))
    return out

def q_interval(kind):
    mA = {}; mB = {}
    def add(m, b, gi, ins): m.setdefault((b, gi), []).extend(ins if isinstance(ins, list) else [ins])
    if kind == 'loop':
        add(mA, 0, 0, f"s_mov_b32 m0, {sr(sWm0)}")
        for i in range(4): add(mA, i, 2, dma_w(i))
        add(mA, 4, 0, f"s_add_u32 m0, {sr(sXr2)}, {sr(sW8)}")
        for i in range(4): add(mA, 4+i, 2, dma_x(i))
        add(mB, 0, 0, f"s_add_u32 m0, m0, {sr(sXm2)}")
        for i in range(4): add(mB, i, 2, dma_x(4+i))
        add(mB, 4, 0, f"s_add_u32 {sr(sXoff)}, {sr(sXoff)}, 128")
        add(mB, 4, 2, f"s_add_u32 {sr(sXoff2)}, {sr(sXoff2)}, 128")
        add(mB, 5, 0, f"s_add_u32 {sr(sWoff)}, {sr(sWoff)}, 524288")
        add(mB, 5, 2, f"s_add_u32 {sr(sWm0)}, {sr(sWm0)}, 16384")
        add(mB, 6, 0, f"s_and_b32 {sr(sWm0)}, {sr(sWm0)}, 0xffff")
        add(mB, 6, 2, f"s_or_b32 {sr(sWm0)}, {sr(sWm0)}, 0x10000")
        nd = 12
    elif kind == 13:
        add(mA, 0, 0, m0_set(sW4, 0))
        for i in range(4): add(mA, i, 2, dma_k(i))
        add(mA, 4, 0, [m0_set(sW4, 65536), f"s_add_u32 {sr(sKoff)}, {sr(sKoff)}, 16384"])
        for i in range(4): add(mA, 4+i, 2, dma_v(i))
        add(mB, 0, 0, [m0_set(sW4, 16384), f"s_add_u32 {sr(sVoff)}, {sr(sVoff)}, 16384"])
        for i in range(4): add(mB, i, 2, dma_k(i))
        add(mB, 4, 0, f"s_add_u32 {sr(sKoff)}, {sr(sKoff)}, 16384")
        nd = 12
    elif kind == 14:
        add(mA, 0, 0, m0_set(sW4, 2*16384))
        for i in range(4): add(mA, i, 2, dma_k(i))
        add(mA, 4, 0, [m0_set(sW4, 65536 + 16384), f"s_add_u32 {sr(sKoff)}, {sr(sKoff)}, 16384"])
        for i in range(4): add(mA, 4+i, 2, dma_v(i))
        add(mB, 4, 0, f"s_add_u32 {sr(sVoff)}, {sr(sVoff)}, 16384")
        nd = 8
    elif kind == 'j0':
        nd = None
    add(mB, 0, 1, [f"s_add_u32 {sr(sWrd)}, {sr(sWrd)}, 16384"])
    add(mB, 0, 2, [f"s_and_b32 {sr(sWrd)}, {sr(sWrd)}, 0xffff"])
    for b in range(1, 8): add(mB, b, 1, f"v_add_u32 {vr(VWR+b-1)}, {sr(sWrd)}, {vr(VVA+b-1)}")
    add(mA, 5, 0, f"v_add_u32 {vr(VXR+0)}, {sr(sXr1)}, {vr(VXR0+0)}")
    add(mB, 5, 1, f"v_add_u32 {vr(VXR+1)}, {sr(sXr1)}, {vr(VXR0+1)}")
    add(mB, 7, 0, [f"s_mov_b32 {sr(sT0)}, {sr(sXr0)}"])
    add(mB, 7, 1, [f"s_mov_b32 {sr(sXr0)}, {sr(sXr1)}"])
    add(mB, 7, 2, [f"s_mov_b32 {sr(sXr1)}, {sr(sXr2)}", f"s_mov_b32 {sr(sXr2)}, {sr(sT0)}"])
    out = []
    if kind == 'j0':
        add(mB, 4, 0, f"v_add_u32 {vr(VXR+0)}, {sr(sXr1)}, {vr(VXR0+0)}")
    else:
        out += q_half(1, rd_hh=0, misc=mA)
        out.append("s_waitcnt lgkmcnt(10)")
    out += q_half(0, first=(kind == 'j0'), rd_hh=1, misc=mB)
    out.append(f"v_add_u32 {vr(VWR+7)}, {sr(sWrd)}, {vr(VVA+7)}")
    out.append("s_waitcnt lgkmcnt(10)")
    if kind == 'j0': nd = 12
    out.append(f"s_waitcnt vmcnt({nd})")
    out.append("s_barrier")
    return out

def setup(cfg):
    a = Asm()
    T = VT
    a(f"""
    s_cmp_ge_u32 s2, 256
    s_cbranch_scc1 L_k1_end
    s_load_dwordx8 {sr(sPA,8)}, s[0:1], 0
    s_load_dwordx8 {sr(sPB,8)}, s[0:1], 40
    s_load_dwordx2 {sr(sPWS,2)}, s[0:1], 96
    v_lshrrev_b32 {vr(T)}, 6, v0
    v_and_b32 v0, 63, v0
    s_and_b32 {sr(sT0)}, s2, 7
    v_readfirstlane_b32 {sr(sWV)}, {vr(T)}
    s_lshr_b32 {sr(sT1)}, s2, 3
    s_and_b32 {sr(sB)}, {sr(sT0)}, 1
    s_lshl_b32 {sr(sB)}, {sr(sB)}, 2
    s_and_b32 {sr(sT2)}, {sr(sT1)}, 3
    s_add_u32 {sr(sB)}, {sr(sB)}, {sr(sT2)}
    s_lshr_b32 {sr(sH)}, {sr(sT0)}, 1
    s_lshl_b32 {sr(sH)}, {sr(sH)}, 3
    s_lshr_b32 {sr(sT2)}, {sr(sT1)}, 2
    s_add_u32 {sr(sH)}, {sr(sH)}, {sr(sT2)}
    s_lshl_b32 {sr(sW4)}, {sr(sWV)}, 12
    s_lshl_b32 {sr(sW8)}, {sr(sWV)}, 13
    s_lshl_b32 {sr(sT2)}, {sr(sB)}, 5
    s_add_u32 {sr(sT2)}, {sr(sT2)}, {sr(sH)}
    s_lshl_b32 {sr(sKV0)}, {sr(sT2)}, 18
    s_cmp_eq_u32 {sr(sWV)}, 3
    s_cselect_b32 {sr(sXd2)}, 15, 16
    s_lshl_b32 {sr(sXd2)}, 1, {sr(sXd2)}
    s_lshr_b32 {sr(sXm2)}, {sr(sXd2)}, 4
    s_mov_b32 {sr(sONE)}, 0x3f803f80
    s_mov_b32 {sr(sItem)}, 0
    s_mov_b32 {sr(sFlag)}, 0
    s_mov_b32 {sr(sK+2)}, 0x4000000
    s_mov_b32 {sr(sK+3)}, 0x00020000
    s_mov_b32 {sr(sV+2)}, 0x4000000
    s_mov_b32 {sr(sV+3)}, 0x00020000
    s_mov_b32 {sr(sX+3)}, 0x00020000
    s_mov_b32 {sr(sW+3)}, 0x00020000
    s_mov_b32 {sr(sO+2)}, {2*512*1920*16 if cfg.stage != 'q' else 0x4000000}
    s_mov_b32 {sr(sO+3)}, 0x00020000
    """)
    c16, g, r, cc, t0, t1, t2 = T, T+1, T+2, T+3, T+4, T+5, T+6
    a(f"""
    v_and_b32 {vr(c16)}, 15, v0
    v_lshrrev_b32 {vr(g)}, 4, v0
    v_lshrrev_b32 {vr(r)}, 2, {vr(c16)}
    v_and_b32 {vr(cc)}, 3, {vr(c16)}
    """)
    a(f"v_lshlrev_b32 {vr(t0)}, 3, {vr(r)}\nv_add_u32 {vr(t0)}, {vr(t0)}, {vr(cc)}\nv_lshlrev_b32 {vr(t0)}, 8, {vr(t0)}")
    for dc in range(4):
        a(f"v_add_u32 {vr(t1)}, {4*dc}, {vr(g)}\nv_xor_b32 {vr(t1)}, {vr(t1)}, {vr(c16)}\nv_lshlrev_b32 {vr(t1)}, 4, {vr(t1)}\nv_add_u32 {vr(VKA+dc)}, {vr(t0)}, {vr(t1)}")
    a(f"""
    v_lshlrev_b32 {vr(t0)}, 3, {vr(g)}
    v_add_u32 {vr(t0)}, {vr(t0)}, {vr(r)}
    v_lshlrev_b32 {vr(t0)}, 8, {vr(t0)}
    v_and_b32 {vr(t1)}, 1, {vr(cc)}
    v_lshlrev_b32 {vr(t1)}, 3, {vr(t1)}
    v_add_u32 {vr(t0)}, {vr(t0)}, {vr(t1)}
    v_add_u32 {vr(t0)}, 0x10000, {vr(t0)}
    v_and_b32 {vr(t1)}, 1, {vr(g)}
    v_lshlrev_b32 {vr(t1)}, 2, {vr(t1)}
    v_or_b32 {vr(t1)}, {vr(t1)}, {vr(r)}
    v_lshlrev_b32 {vr(t1)}, 1, {vr(t1)}
    v_lshrrev_b32 {vr(cc)}, 1, {vr(cc)}
    """)
    for dt in range(8):
        a(f"v_add_u32 {vr(t2)}, {2*dt}, {vr(cc)}\nv_xor_b32 {vr(t2)}, {vr(t2)}, {vr(t1)}\nv_lshlrev_b32 {vr(t2)}, 4, {vr(t2)}\nv_add_u32 {vr(VVA+dt)}, {vr(t0)}, {vr(t2)}")
    a(f"v_lshlrev_b32 {vr(t0)}, 8, {vr(g)}\nv_add_u32 {vr(t0)}, {sr(sW4)}, {vr(t0)}")
    for i2 in range(2):
        a(f"""
        s_lshl_b32 {sr(sT2)}, {sr(sWV)}, 1
        s_add_u32 {sr(sT2)}, {sr(sT2)}, {i2}
        s_and_b32 {sr(sT2)}, {sr(sT2)}, 3
        s_lshl_b32 {sr(sT2)}, {sr(sT2)}, 2
        v_or_b32 {vr(t1)}, {sr(sT2)}, {vr(g)}
        v_xor_b32 {vr(t1)}, {vr(t1)}, {vr(c16)}
        v_lshlrev_b32 {vr(t1)}, 4, {vr(t1)}
        v_add_u32 {vr(VKD+i2)}, {vr(t0)}, {vr(t1)}
        v_or_b32 {vr(t1)}, {4*i2}, {vr(g)}
        v_lshlrev_b32 {vr(t1)}, 1, {vr(t1)}
        v_xor_b32 {vr(t1)}, {vr(t1)}, {vr(c16)}
        v_lshlrev_b32 {vr(t1)}, 4, {vr(t1)}
        v_add_u32 {vr(VVD+i2)}, {vr(t0)}, {vr(t1)}
        """)
    a(f"""
    s_lshl_b32 {sr(sT2)}, {sr(sWV)}, 4
    v_add_u32 {vr(t0)}, {sr(sT2)}, {vr(g)}
    v_lshlrev_b32 {vr(t0)}, 13, {vr(t0)}
    """)
    for i in range(4):
        a(f"""
        v_or_b32 {vr(t1)}, {4*(i>>1)}, {vr(g)}
        v_lshlrev_b32 {vr(t1)}, 1, {vr(t1)}
        v_xor_b32 {vr(t1)}, {vr(t1)}, {vr(c16)}
        v_lshlrev_b32 {vr(t1)}, 4, {vr(t1)}
        v_add_u32 {vr(t1)}, {vr(t0)}, {vr(t1)}
        v_add_u32 {vr(VWD+i)}, {i*(4*8192-1024)}, {vr(t1)}
        """)
    a(f"""
    v_lshrrev_b32 {vr(t0)}, 3, v0
    v_and_b32 {vr(t1)}, 7, v0
    v_xor_b32 {vr(t1)}, {vr(t1)}, {vr(t0)}
    v_lshlrev_b32 {vr(t1)}, 4, {vr(t1)}
    s_lshl_b32 {sr(sT2)}, {sr(sWV)}, 6
    v_add_u32 {vr(t0)}, {sr(sT2)}, {vr(t0)}
    v_lshlrev_b32 {vr(t0)}, 11, {vr(t0)}
    v_add_u32 {vr(t0)}, {vr(t0)}, {vr(t1)}
    """)
    for i in range(4):
        a(f"v_add_u32 {vr(VXD+i)}, {i*(16384-1024)}, {vr(t0)}")
    a(f"""
    v_lshlrev_b32 {vr(t0)}, 7, {vr(c16)}
    v_add_u32 {vr(t0)}, {sr(sW8)}, {vr(t0)}
    v_and_b32 {vr(t2)}, 7, {vr(c16)}
    """)
    for kc in range(2):
        a(f"v_add_u32 {vr(t1)}, {4*kc}, {vr(g)}\nv_xor_b32 {vr(t1)}, {vr(t1)}, {vr(t2)}\nv_lshlrev_b32 {vr(t1)}, 4, {vr(t1)}\nv_add_u32 {vr(VXR0+kc)}, {vr(t0)}, {vr(t1)}")
    a(f"""
    s_lshl_b32 {sr(sT2)}, {sr(sWV)}, 6
    v_add_u32 {vr(t0)}, {sr(sT2)}, {vr(c16)}
    v_lshlrev_b32 {vr(t0)}, 4, {vr(t0)}
    v_mul_u32_u24 {vr(t1)}, 30720, {vr(g)}
    v_add_u32 {vr(VOS)}, {vr(t0)}, {vr(t1)}
    """)
    for i in range(4): a(f"v_mov_b32 {vr(ONES+i)}, {sr(sONE)}")
    if cfg.stage == 'q': a("v_lshlrev_b32 v250, 2, v0")
    a(f"""
    s_waitcnt lgkmcnt(0)
    s_mov_b32 {sr(sO)}, {sr(sPWS)}
    s_mov_b32 {sr(sO+1)}, {sr(sPWS+1)}
    """)
    return a.L

def set_xw_srd(a, base):
    a(f"""
    s_mov_b32 {sr(sX)}, {sr(base+0)}
    s_mov_b32 {sr(sX+1)}, {sr(base+1)}
    s_mov_b32 {sr(sX+2)}, {8*240*2048}
    s_mov_b32 {sr(sW)}, {sr(base+6)}
    s_mov_b32 {sr(sW+1)}, {sr(base+7)}
    s_mov_b32 {sr(sW+2)}, {1024*8192}
    """)
def set_kv_srd(a, base):
    a(f"""
    s_mov_b32 {sr(sK)}, {sr(base+2)}
    s_mov_b32 {sr(sK+1)}, {sr(base+3)}
    s_mov_b32 {sr(sV)}, {sr(base+4)}
    s_mov_b32 {sr(sV+1)}, {sr(base+5)}
    """)
def reset_xw_off(a):
    a(f"""
    s_mul_i32 {sr(sXoff)}, {sr(sB)}, 491520
    s_add_u32 {sr(sXoff2)}, {sr(sXoff)}, {sr(sXd2)}
    s_lshl_b32 {sr(sWoff)}, {sr(sH)}, 8
    """)

def x_dma_tile(a, t):
    a(f"s_add_u32 m0, {sr(sW8)}, {XB[(t+2)%3]}" if XB[(t+2)%3] else f"s_mov_b32 m0, {sr(sW8)}")
    a("s_nop 0")
    for i in range(4): a(dma_x(i))
    a(f"s_add_u32 m0, m0, {sr(sXm2)}\ns_nop 0")
    for i in range(4): a(dma_x(4+i))
    a(f"s_add_u32 {sr(sXoff)}, {sr(sXoff)}, 128\ns_add_u32 {sr(sXoff2)}, {sr(sXoff2)}, 128")
def w_dma_tile(a, t):
    a(f"s_add_u32 m0, {sr(sW4)}, {65536 + (t & 3)*16384}\ns_nop 0")
    for i in range(4): a(dma_w(i))
    a(f"s_add_u32 {sr(sWoff)}, {sr(sWoff)}, 524288")

def q_ring_init(a):
    a(f"""
    s_mov_b32 {sr(sXr0)}, {XB[2]}
    s_mov_b32 {sr(sXr1)}, {XB[0]}
    s_mov_b32 {sr(sXr2)}, {XB[1]}
    s_mov_b32 {sr(sWrd)}, 0
    s_add_u32 {sr(sWm0)}, {sr(sW4)}, {65536 + 3*16384}
    """)
    for dt in range(8): a(f"v_mov_b32 {vr(VWR+dt)}, {vr(VVA+dt)}")
    for kc in range(2): a(f"v_add_u32 {vr(VXR+kc)}, {XB[2]}, {vr(VXR0+kc)}")

def q_epilogue(a):
    a(f"s_mov_b32 {sr(sT0)}, {hex(f32bits(QSCALE))}")
    a("s_nop 7")
    for dc in range(4):
        for qt in range(4):
            for t in range(2):
                for r in range(4):
                    x = vr(Acc(2*dc+t, qt, r)); a(f"v_mul_f32 {x}, {sr(sT0)}, {x}")
            for t in range(2):
                for i in range(2):
                    a(f"v_cvt_pk_bf16_f32 {vr(Qreg(qt,dc,2*t+i))}, {vr(Acc(2*dc+t,qt,2*i))}, {vr(Acc(2*dc+t,qt,2*i+1))}")
            a("s_nop 1")
            for i in range(2): a(f"v_permlane32_swap_b32 {vr(Qreg(qt,dc,i))}, {vr(Qreg(qt,dc,2+i))}")
            a("s_nop 0")
            for i in range(2): a(f"v_permlane16_swap_b32 {vr(Qreg(qt,dc,i))}, {vr(Qreg(qt,dc,2+i))}")

import struct
def f32bits(x): return struct.unpack("<I", struct.pack("<f", x))[0]

def xrow_reduce(a, reg, tmp, op):
    a(f"v_mov_b32 {vr(tmp)}, {vr(reg)}\ns_nop 1\nv_permlane32_swap_b32 {vr(reg)}, {vr(tmp)}\ns_nop 1\n{op} {vr(reg)}, {vr(reg)}, {vr(tmp)}")
    a(f"s_nop 0\nv_mov_b32 {vr(tmp)}, {vr(reg)}\ns_nop 1\nv_permlane16_swap_b32 {vr(reg)}, {vr(tmp)}\ns_nop 1\n{op} {vr(reg)}, {vr(reg)}, {vr(tmp)}\ns_nop 0")

def max_pass(cfg, a):
    MX = VT
    a("s_waitcnt vmcnt(0)\ns_barrier")
    for qt in range(4): a(f"v_mov_b32 {vr(MX+qt)}, 0xff800000")
    a(f"s_add_u32 {sr(sT2)}, {sr(sKV0)}, {15*16384}\ns_mov_b32 {sr(sCnt)}, 16")
    a.label("L_k1_mx")
    a(f"s_mov_b32 m0, {sr(sW4)}\ns_nop 0")
    for i in range(4): a(dma(VKD+(i>>1), sK, sT2, i))
    a("s_waitcnt vmcnt(0)\ns_barrier")
    for hh in range(2):
        for i in range(8): a(k_read(i, 0, hh))
        a("s_waitcnt lgkmcnt(0)")
        for b in range(8):
            for qt in range(4): a(mf_qk(b >> 2, b & 3, qt, 0, czero=True))
        a("s_nop 7\ns_nop 1")
        for qt in range(4):
            for kt in range(2):
                for r in (0, 2):
                    a(f"v_max3_f32 {vr(MX+qt)}, {vr(MX+qt)}, {vr(Sreg(0,kt,qt,r))}, {vr(Sreg(0,kt,qt,r+1))}")
        a("s_nop 1")
    a(f"s_barrier\ns_sub_u32 {sr(sT2)}, {sr(sT2)}, 16384\ns_sub_u32 {sr(sCnt)}, {sr(sCnt)}, 1\ns_cmp_lg_u32 {sr(sCnt)}, 0\ns_cbranch_scc1 L_k1_mx")
    for qt in range(4):
        xrow_reduce(a, MX+qt, MX+4, "v_max_f32")
        for r in range(4): a(f"v_sub_f32 {vr(NEGM+4*qt+r)}, 0, {vr(MX+qt)}")

def gen_k1(cfg):
    a = Asm()
    a.ext(setup(cfg))
    a.label("L_k1_cold")
    a(f"s_cmp_eq_u32 {sr(sItem)}, 0\ns_cbranch_scc0 L_k1_coldB")
    set_xw_srd(a, sPA); set_kv_srd(a, sPA)
    a("s_branch L_k1_cold2")
    a.label("L_k1_coldB")
    set_xw_srd(a, sPB); set_kv_srd(a, sPB)
    a.label("L_k1_cold2")
    reset_xw_off(a)
    for t in range(3):
        w_dma_tile(a, t); x_dma_tile(a, t)
    q_ring_init(a)
    a("s_waitcnt vmcnt(24)\ns_barrier")
    for qt in range(4): a(x_read(qt, 0, 0))
    for dt in range(8):
        a(w_read(dt, 0, 0)); a(w_read(dt, 1, 0))
    a("s_waitcnt lgkmcnt(0)")
    a.label("L_k1_q")
    a(f"s_mov_b32 {sr(sKoff)}, {sr(sKV0)}\ns_mov_b32 {sr(sVoff)}, {sr(sKV0)}")
    a.ext(q_interval('j0'))
    a(f"s_mov_b32 {sr(sCnt)}, 13")
    a.label("L_k1_qloop")
    body = q_interval('loop')
    a.ext(body[:-3])
    a(f"s_sub_u32 {sr(sCnt)}, {sr(sCnt)}, 1\ns_cmp_lg_u32 {sr(sCnt)}, 0")
    a.ext(body[-3:])
    a("s_cbranch_scc1 L_k1_qloop")
    a.ext(q_interval(13))
    a.ext(q_interval(14))
    a.ext(q_half(1, rd_hh=None))
    a(f"s_cmp_eq_u32 {sr(sItem)}, 0\ns_cbranch_scc0 L_k1_nonext")
    set_xw_srd(a, sPB)
    a("s_branch L_k1_next2")
    a.label("L_k1_nonext")
    a(f"s_mov_b32 {sr(sX+2)}, 0\ns_mov_b32 {sr(sW+2)}, 0")
    a.label("L_k1_next2")
    reset_xw_off(a)
    q_epilogue(a)
    if cfg.stage == "q":
        a(f"""
        s_lshl_b32 {sr(sT0)}, {sr(sItem)}, 8
        s_add_u32 {sr(sT0)}, {sr(sT0)}, s2
        s_lshl_b32 {sr(sT0)}, {sr(sT0)}, 2
        s_add_u32 {sr(sT0)}, {sr(sT0)}, {sr(sWV)}
        s_lshl_b32 {sr(sT0)}, {sr(sT0)}, 14
        """)
        for i in range(64):
            a(f"buffer_store_dword {vr(QF+i)}, v250, {sr(sO,4)}, {sr(sT0)} offen offset:{(i%16)*256}")
            if i % 16 == 15: a(f"s_add_u32 {sr(sT0)}, {sr(sT0)}, 4096")
        a("s_waitcnt vmcnt(0)\ns_barrier")
        a(f"s_add_u32 {sr(sItem)}, {sr(sItem)}, 1\ns_cmp_lt_u32 {sr(sItem)}, 2\ns_cbranch_scc1 L_k1_cold\ns_branch L_k1_end")
        a.label("L_k1_end")
        a("s_endpgm")
        return a
    a(f"s_cmp_eq_u32 {sr(sFlag)}, 0\ns_cbranch_scc0 L_k1_truemax")
    for i in range(16): a(f"v_mov_b32 {vr(NEGM+i)}, 0")
    a.label("L_k1_att")
    if cfg.summode != "mfma":
        for qt in range(4): a(f"v_mov_b32 {vr(LACC+qt)}, 0")
    for i in range(8): a(k_read(i, 0, 0))
    a("s_waitcnt lgkmcnt(0)")
    for b in range(8):
        for qt in range(4): a(mf_qk(b >> 2, b & 3, qt, 0))
        a(k_read(b, 0, 1))
    a("s_waitcnt lgkmcnt(0)\ns_nop 4")
    a.ext(att_step(cfg, 0))
    a(f"s_mov_b32 {sr(sCnt)}, 3")
    a.label("L_k1_aloop")
    for s in (1, 2, 3, 4):
        st = att_step(cfg, s)
        if s == 4:
            a.ext(st[:-2])
            a(f"s_sub_u32 {sr(sCnt)}, {sr(sCnt)}, 1\ns_cmp_lg_u32 {sr(sCnt)}, 0")
            a.ext(st[-2:])
        else:
            a.ext(st)
    a("s_cbranch_scc1 L_k1_aloop")
    for s in (13, 14, 15): a.ext(att_step(cfg, s))
    q_ring_init(a)
    misc = {}
    def add(b, gi, ins): misc.setdefault((b, gi), []).extend(ins if isinstance(ins, list) else [ins])
    add(0, 4, m0_set(sW4, 65536 + 2*16384))
    for i in range(4): add(i, 6, dma_w(i))
    add(4, 4, m0_set(sW8, XB[1]))
    for i in range(4): add(4+i, 5, dma_x(i))
    for b in range(4): add(b, 5, x_read(b, 0, 0))
    fin = half_step(cfg, 0, do_qk=False, do_sm=False, do_pv=True, kread=None, vread=None, prev_vread=(3, 1),
                    misc=misc, wreads=lambda b: [w_read(b, 0, 0), w_read(b, 1, 0)], waits=False)
    a("s_waitcnt lgkmcnt(0)")
    k7 = [i for i, x in enumerate(fin) if x.startswith(MF) and ar(Oreg(7, 0), 4) + "," in x][0]
    a.ext(fin[:k7]); a("s_waitcnt lgkmcnt(8)"); a.ext(fin[k7:])
    a(f"s_add_u32 m0, m0, {sr(sXm2)}\ns_add_u32 {sr(sWoff)}, {sr(sWoff)}, 524288")
    for i in range(4): a(dma_x(4+i))
    a(f"s_add_u32 {sr(sXoff)}, {sr(sXoff)}, 128\ns_add_u32 {sr(sXoff2)}, {sr(sXoff2)}, 128")
    a("s_nop 7")
    L = [LACC + 4*qt if cfg.summode == "mfma" else LACC + qt for qt in range(4)]
    if cfg.summode != "mfma":
        for qt in range(4): xrow_reduce(a, L[qt], VT, "v_add_f32")
    lo = hex(f32bits(2.0**-24)); hi = hex(f32bits(2.0**24))
    a(f"s_mov_b32 {sr(sT0)}, {lo}\ns_mov_b32 {sr(sT1)}, {hi}\ns_mov_b64 {sr(sT2,2)}, 0")
    for qt in range(4):
        if qt == 3: a(f"s_cmp_eq_u32 {sr(sWV)}, 3\ns_cbranch_scc1 L_k1_chk3")
        a(f"v_cmp_nle_f32 vcc, {sr(sT0)}, {vr(L[qt])}\ns_or_b64 {sr(sT2,2)}, {sr(sT2,2)}, vcc")
        a(f"v_cmp_nge_f32 vcc, {sr(sT1)}, {vr(L[qt])}\ns_or_b64 {sr(sT2,2)}, {sr(sT2,2)}, vcc")
    a.label("L_k1_chk3")
    a(f"s_cmp_lg_u64 {sr(sT2,2)}, 0\ns_cselect_b32 {sr(sT0)}, 1, 0")
    a(f"v_mov_b32 {vr(VT)}, {sr(sT0)}\ns_lshl_b32 {sr(sT1)}, {sr(sWV)}, 2\ns_add_u32 {sr(sT1)}, {sr(sT1)}, {FLG}\nv_mov_b32 {vr(VT+1)}, {sr(sT1)}\ns_nop 0")
    a(f"ds_write_b32 {vr(VT+1)}, {vr(VT)}")
    for qt in range(4): a(f"v_rcp_f32 {vr(VRL+qt)}, {vr(L[qt])}")
    a(f"""
    s_mul_i32 {sr(sO0)}, {sr(sItem)}, {512*1920*16}
    s_mul_i32 {sr(sT0)}, {sr(sH)}, {16*30720}
    s_add_u32 {sr(sO0)}, {sr(sO0)}, {sr(sT0)}
    s_mul_i32 {sr(sT0)}, {sr(sB)}, {240*16}
    s_add_u32 {sr(sO0)}, {sr(sO0)}, {sr(sT0)}
    """)
    TA = 240
    n = 0
    for qt in range(4):
        if qt == 3: a(f"s_cmp_eq_u32 {sr(sWV)}, 3\ns_cbranch_scc1 L_k1_epi_done")
        for m in range(4):
            t = TA + (n & 1)*8; n += 1
            for tt in range(2):
                for r in range(4): a(f"v_accvgpr_read_b32 {vr(t+4*tt+r)}, {ar(Oreg(2*m+tt, qt, r))}")
            for i in range(8): a(f"v_mul_f32 {vr(t+i)}, {vr(VRL+qt)}, {vr(t+i)}")
            for i in range(4): a(f"v_cvt_pk_bf16_f32 {vr(t+i)}, {vr(t+2*i)}, {vr(t+2*i+1)}")
            a(f"s_add_u32 {sr(sT0)}, {sr(sO0)}, {m*122880}")
            a(f"buffer_store_dwordx4 {vr(t,4)}, {vr(VOS)}, {sr(sO,4)}, {sr(sT0)} offen offset:{qt*256}")
    a.label("L_k1_epi_done")
    a(f"s_waitcnt lgkmcnt(0)\ns_barrier\nv_mov_b32 {vr(VT+1)}, {FLG}\ns_nop 0\nds_read_b128 {vr(240,4)}, {vr(VT+1)}\ns_waitcnt lgkmcnt(0)")
    a(f"v_or_b32 v240, v240, v241\nv_or_b32 v242, v242, v243\nv_or_b32 v240, v240, v242\ns_nop 0\nv_readfirstlane_b32 {sr(sT0)}, v240")
    if cfg.fallback:
        a(f"s_cmp_eq_u32 {sr(sFlag)}, 0\ns_cselect_b32 {sr(sT0)}, {sr(sT0)}, 0\ns_cmp_lg_u32 {sr(sT0)}, 0\ns_cbranch_scc1 L_k1_redo")
    a(f"s_add_u32 {sr(sItem)}, {sr(sItem)}, 1\ns_cmp_lt_u32 {sr(sItem)}, 2\ns_cbranch_scc0 L_k1_end")
    a(f"s_mov_b32 {sr(sFlag)}, 0")
    set_kv_srd(a, sPB)
    a("s_branch L_k1_q")
    a.label("L_k1_redo")
    a(f"s_mov_b32 {sr(sFlag)}, 1\ns_waitcnt vmcnt(0)\ns_barrier\ns_branch L_k1_cold")
    a.label("L_k1_truemax")
    max_pass(cfg, a)
    a("s_branch L_k1_att")
    a.label("L_k1_end")
    a("s_waitcnt vmcnt(0)\ns_endpgm")
    return a
```

```python
from asmlib import *
MF = "v_mfma_f32_16x16x32_bf16"
ACC = 0; WF = 64; OF = 128; VWR = 192; VWD = 200; VOL = 204; VST = 205; VT = 206
sO = 8; sW = 12; sD = 16
sOA = 20; sOB = 21; sWoff = 22; sM0 = 23; sCnt = 24; sWV = 25; sBR = 26; sRT = 27; sCT = 28
sT0 = 30; sT1 = 31; sT2 = 32; sT3 = 33
sP = 36
OSTEP = 8*30720

class Cfg2:
    nt_o = ""
    nt_w = ""

def acc(T, qt, r=0): return ACC + (T*2+qt)*4 + r
def wf(ks, T): return WF + ks*32 + T*4
def of(st, ks, qt): return OF + (st & 3)*16 + (ks*2+qt)*4
def mf(T, qt, ks, st):
    d = vr(acc(T, qt), 4)
    return f"{MF} {d}, {vr(wf(ks,T),4)}, {vr(of(st,ks,qt),4)}, {d}"
def w_read(T, u, ks, slot):
    return f"ds_read_b64_tr_b16 {vr(wf(ks,T)+2*u,2)}, {vr(VWR+T)} offset:{slot*16384 + ks*8192 + u*4096}"
def o_load(cfg, st, ks, qt):
    return f"buffer_load_dwordx4 {vr(of(st,ks,qt),4)}, {vr(VOL)}, {sr(sO,4)}, {sr(sOA if ks == 0 else sOB)} offen offset:{qt*256}{cfg.nt_o}"
def w_dma(cfg, i):
    return f"buffer_load_dwordx4 {vr(VWD+i)}, {sr(sW,4)}, {sr(sWoff)} offen offset:{i*1024}{cfg.nt_w} lds"

def step(cfg, s, ld_o=True, ld_w=True, rd_next=True, vm=16):
    out = []
    slot = s & 3
    for T in range(8):
        for qt in range(2):
            out.append(mf(T, qt, 0, s))
            n = T*2+qt
            if n < 8:
                out.append(w_read(n, 0, 1, slot)); out.append(w_read(n, 1, 1, slot))
            if n == 5 and not (T == 0): pass
            if ld_o and n in (8, 9, 10, 11):
                j = n - 8
                out.append(o_load(cfg, s+3, j >> 1, j & 1))
            if ld_o and n == 12: out.append(f"s_add_u32 {sr(sOA)}, {sr(sOA)}, {OSTEP}")
            if ld_o and n == 13: out.append(f"s_add_u32 {sr(sOB)}, {sr(sOB)}, {OSTEP}")
    out.append(f"s_waitcnt vmcnt({vm}) lgkmcnt(0)")
    out.append("s_barrier")
    for T in range(8):
        for qt in range(2):
            out.append(mf(T, qt, 1, s))
            n = T*2+qt
            if rd_next and n < 8:
                out.append(w_read(n, 0, 0, (s+1) & 3)); out.append(w_read(n, 1, 0, (s+1) & 3))
            if ld_w and n == 7:
                out.append(f"s_add_u32 m0, {sr(sM0)}, {slot*16384}" if slot else f"s_mov_b32 m0, {sr(sM0)}")
            if ld_w and n in (8, 9, 10, 11): out.append(w_dma(cfg, n-8))
            if ld_w and n == 12: out.append(f"s_add_u32 {sr(sWoff)}, {sr(sWoff)}, 131072")
    if rd_next: out.append("s_waitcnt lgkmcnt(0)")
    return out

def gen_k2(cfg):
    a = Asm()
    T = VT
    a(f"""
    s_cmp_ge_u32 s2, 256
    s_cbranch_scc1 L_k2_end
    s_and_b32 {sr(sT0)}, s2, 7
    s_lshr_b32 {sr(sT1)}, s2, 3
    s_and_b32 {sr(sRT)}, {sr(sT0)}, 1
    s_lshl_b32 {sr(sRT)}, {sr(sRT)}, 3
    s_lshr_b32 {sr(sT2)}, {sr(sT1)}, 2
    s_add_u32 {sr(sRT)}, {sr(sRT)}, {sr(sT2)}
    s_cmp_ge_u32 {sr(sRT)}, 15
    s_cbranch_scc1 L_k2_end
    s_load_dwordx2 {sr(sP,2)}, s[0:1], 96
    s_load_dwordx2 {sr(sP+2,2)}, s[0:1], 80
    s_load_dwordx2 {sr(sP+4,2)}, s[0:1], 32
    s_load_dwordx2 {sr(sP+6,2)}, s[0:1], 72
    s_lshr_b32 {sr(sBR)}, {sr(sT0)}, 2
    s_lshr_b32 {sr(sCT)}, {sr(sT0)}, 1
    s_and_b32 {sr(sCT)}, {sr(sCT)}, 1
    s_lshl_b32 {sr(sCT)}, {sr(sCT)}, 2
    s_and_b32 {sr(sT2)}, {sr(sT1)}, 3
    s_add_u32 {sr(sCT)}, {sr(sCT)}, {sr(sT2)}
    v_lshrrev_b32 {vr(T)}, 6, v0
    v_and_b32 v0, 63, v0
    s_mov_b32 {sr(sO+2)}, {2*512*1920*16}
    v_readfirstlane_b32 {sr(sWV)}, {vr(T)}
    s_mov_b32 {sr(sO+3)}, 0x00020000
    s_mov_b32 {sr(sW+2)}, {4096*2048}
    s_mov_b32 {sr(sW+3)}, 0x00020000
    s_mov_b32 {sr(sD+2)}, {1920*4096}
    s_mov_b32 {sr(sD+3)}, 0x00020000
    s_lshl_b32 {sr(sM0)}, {sr(sWV)}, 12
    """)
    c16, g, r, cc, t0, t1, t2 = T, T+1, T+2, T+3, T+4, T+5, T+6
    a(f"""
    v_and_b32 {vr(c16)}, 15, v0
    v_lshrrev_b32 {vr(g)}, 4, v0
    v_lshrrev_b32 {vr(r)}, 2, {vr(c16)}
    v_and_b32 {vr(cc)}, 3, {vr(c16)}
    """)
    a(f"""
    s_lshl_b32 {sr(sT2)}, {sr(sRT)}, 7
    s_lshl_b32 {sr(sT3)}, {sr(sWV)}, 5
    s_add_u32 {sr(sT2)}, {sr(sT2)}, {sr(sT3)}
    v_add_u32 {vr(t0)}, {sr(sT2)}, {vr(c16)}
    v_lshlrev_b32 {vr(t1)}, 4, {vr(t0)}
    v_mul_u32_u24 {vr(t2)}, 30720, {vr(g)}
    v_add_u32 {vr(VOL)}, {vr(t1)}, {vr(t2)}
    v_lshlrev_b32 {vr(t0)}, 12, {vr(t0)}
    v_lshlrev_b32 {vr(t1)}, 4, {vr(g)}
    v_add_u32 {vr(VST)}, {vr(t0)}, {vr(t1)}
    s_mul_i32 {sr(sOA)}, {sr(sBR)}, {512*1920*16}
    s_add_u32 {sr(sOB)}, {sr(sOA)}, 122880
    s_mov_b32 {sr(sWoff)}, 0
    """)
    a(f"""
    s_lshl_b32 {sr(sT2)}, {sr(sWV)}, 4
    v_add_u32 {vr(t0)}, {sr(sT2)}, {vr(g)}
    v_lshlrev_b32 {vr(t0)}, 11, {vr(t0)}
    s_lshl_b32 {sr(sT2)}, {sr(sCT)}, 8
    v_add_u32 {vr(t0)}, {sr(sT2)}, {vr(t0)}
    """)
    for i in range(4):
        a(f"""
        v_or_b32 {vr(t1)}, {4*(i&1)}, {vr(g)}
        v_lshlrev_b32 {vr(t1)}, 1, {vr(t1)}
        v_xor_b32 {vr(t1)}, {vr(t1)}, {vr(c16)}
        v_lshlrev_b32 {vr(t1)}, 4, {vr(t1)}
        v_add_u32 {vr(t1)}, {vr(t0)}, {vr(t1)}
        v_add_u32 {vr(VWD+i)}, {i*(4*2048-1024)}, {vr(t1)}
        """)
    a("s_waitcnt lgkmcnt(0)")
    a(f"""
    s_mov_b32 {sr(sO)}, {sr(sP)}
    s_mov_b32 {sr(sO+1)}, {sr(sP+1)}
    s_mov_b32 {sr(sD)}, {sr(sP+2)}
    s_mov_b32 {sr(sD+1)}, {sr(sP+3)}
    s_cmp_eq_u32 {sr(sBR)}, 0
    s_cselect_b32 {sr(sW)}, {sr(sP+4)}, {sr(sP+6)}
    s_cselect_b32 {sr(sW+1)}, {sr(sP+5)}, {sr(sP+7)}
    """)
    for s in range(4):
        a(f"s_add_u32 m0, {sr(sM0)}, {s*16384}" if s else f"s_mov_b32 m0, {sr(sM0)}")
        a("s_nop 0")
        for i in range(4): a(w_dma(cfg, i))
        a(f"s_add_u32 {sr(sWoff)}, {sr(sWoff)}, 131072")
        if s < 3:
            for j in range(4): a(o_load(cfg, s, j >> 1, j & 1))
            a(f"s_add_u32 {sr(sOA)}, {sr(sOA)}, {OSTEP}\ns_add_u32 {sr(sOB)}, {sr(sOB)}, {OSTEP}")
    a(f"""
    v_lshlrev_b32 {vr(t0)}, 2, {vr(g)}
    v_add_u32 {vr(t0)}, {vr(t0)}, {vr(r)}
    v_lshlrev_b32 {vr(t0)}, 8, {vr(t0)}
    v_and_b32 {vr(t1)}, 1, {vr(cc)}
    v_lshlrev_b32 {vr(t1)}, 3, {vr(t1)}
    v_add_u32 {vr(t0)}, {vr(t0)}, {vr(t1)}
    v_and_b32 {vr(t1)}, 1, {vr(g)}
    v_lshlrev_b32 {vr(t1)}, 2, {vr(t1)}
    v_or_b32 {vr(t1)}, {vr(t1)}, {vr(r)}
    v_lshlrev_b32 {vr(t1)}, 1, {vr(t1)}
    v_lshrrev_b32 {vr(cc)}, 1, {vr(cc)}
    """)
    for Tn in range(8):
        a(f"v_add_u32 {vr(t2)}, {2*Tn}, {vr(cc)}\nv_xor_b32 {vr(t2)}, {vr(t2)}, {vr(t1)}\nv_lshlrev_b32 {vr(t2)}, 4, {vr(t2)}\nv_add_u32 {vr(VWR+Tn)}, {vr(t0)}, {vr(t2)}")
    for i in range(64): a(f"v_mov_b32 {vr(ACC+i)}, 0")
    a("s_waitcnt vmcnt(20)\ns_barrier")
    for Tn in range(8):
        a(w_read(Tn, 0, 0, 0)); a(w_read(Tn, 1, 0, 0))
    a(f"s_mov_b32 {sr(sCnt)}, 15")
    a("s_waitcnt lgkmcnt(0)")
    a.label("L_k2_loop")
    for s in range(4):
        st = step(cfg, s)
        if s == 3:
            a.ext(st[:-1]); a(f"s_sub_u32 {sr(sCnt)}, {sr(sCnt)}, 1\ns_cmp_lg_u32 {sr(sCnt)}, 0"); a.ext(st[-1:])
        else: a.ext(st)
    a("s_cbranch_scc1 L_k2_loop")
    a.ext(step(cfg, 0, ld_o=True, ld_w=False, vm=16))
    a.ext(step(cfg, 1, ld_o=False, ld_w=False, vm=8))
    a.ext(step(cfg, 2, ld_o=False, ld_w=False, vm=0))
    a.ext(step(cfg, 3, ld_o=False, ld_w=False, rd_next=False, vm=0))
    a("s_nop 7")
    a(f"s_lshl_b32 {sr(sT0)}, {sr(sBR)}, 11\ns_lshl_b32 {sr(sT1)}, {sr(sCT)}, 8\ns_add_u32 {sr(sT0)}, {sr(sT0)}, {sr(sT1)}\ns_add_u32 {sr(sT1)}, {sr(sT0)}, 65536")
    n = 0
    for qt in range(2):
        for m in range(4):
            t = WF + (n & 3)*4; n += 1
            for tt in range(2):
                for i in range(2):
                    a(f"v_cvt_pk_bf16_f32 {vr(t+2*tt+i)}, {vr(acc(2*m+tt,qt,2*i))}, {vr(acc(2*m+tt,qt,2*i+1))}")
            a("s_nop 1")
            for i in range(2): a(f"v_permlane32_swap_b32 {vr(t+i)}, {vr(t+2+i)}")
            a("s_nop 1")
            for i in range(2): a(f"v_permlane16_swap_b32 {vr(t+i)}, {vr(t+2+i)}")
            a("s_nop 0")
            a(f"buffer_store_dwordx4 {vr(t,4)}, {vr(VST)}, {sr(sD,4)}, {sr(sT0 if qt == 0 else sT1)} offen offset:{m*64}")
    a.label("L_k2_end")
    a("s_endpgm")
    return a
```

```python
import sys; sys.path.insert(0,'dev')
from asmlib import *
NAME = "concat_heads__mha_block_cached__mha_block_cached__near_ridge"
def wrap(kernels, header_extra=""):
    t = []
    if len(kernels) == 1:
        l, L, g, b, lds, vg, ac = kernels[0]
        t.append(f"; @launch grid=({g},1,1) block=({b},1,1) lds={lds}")
    else:
        for l, L, g, b, lds, vg, ac in kernels:
            t.append(f"; @launch kernel={l} grid=({g},1,1) block=({b},1,1) lds={lds}")
    t.append(header_extra)
    t.append('.amdgcn_target "amdgcn-amd-amdhsa--gfx950"\n.text')
    for l, L, g, b, lds, vg, ac in kernels:
        t.append(f".globl {l}\n.p2align 8\n.type {l},@function\n{l}:")
        t.append("\n".join(("    " + x if not x.endswith(":") else x) for x in L))
    t.append('.section .rodata,"a"')
    for l, L, g, b, lds, vg, ac in kernels:
        t.append(".p2align 6")
        t.append(kd(l, vg, ac))
    return "\n".join(t)
```

```python
import sys; sys.path.insert(0,'dev')
import k1, k2, mk
def build(c1=None, c2=None):
    c1 = c1 or k1.Cfg(); c2 = c2 or k2.Cfg2()
    a1 = k1.gen_k1(c1); a2 = k2.gen_k2(c2)
    name = mk.NAME+"_kernel"
    return mk.wrap([(name, a1.L, 256, 256, 163840, 512, 256), ("oproj_kernel", a2.L, 256, 256, 65536, 256, 256)]), name
if __name__ == "__main__":
    import asm_local
    txt, name = build()
    out = sys.argv[1] if len(sys.argv) > 1 else "cdna_kernels/"+mk.NAME+".s"
    open(out, "w").write(txt)
    print(len(txt), asm_local.check(txt, name))
```
